```python
import torch

def _softmax(x, axis=-1):
    return torch.softmax(x, dim=axis)
def _gelu(x):
    return torch.nn.functional.gelu(x, approximate="tanh")
def _silu(x):
    return torch.nn.functional.silu(x)
def _sigmoid(x):
    return torch.sigmoid(x)
def _layernorm(x, axis=-1, eps=1e-5):
    m = x.mean(dim=axis, keepdim=True)
    v = x.var(dim=axis, keepdim=True, unbiased=False)
    return (x - m) / torch.sqrt(v + eps)
def _scatter_add(tgt, idx, src, axis=0):
    return tgt.clone().index_add_(axis, idx, src)
def _segment_sum(src, seg, n):
    out = torch.zeros((n,) + src.shape[1:], dtype=src.dtype)
    return out.index_add_(0, seg, src)
def _pad(x, pw):
    flat = tuple(v for pair in reversed(pw) for v in pair)
    return torch.nn.functional.pad(x, flat)

kernel_name = 'standalone__low_rank_proj_linformer__decode'

def setup_inputs():

    _w = (lambda a: (lambda t: t.to(torch.bfloat16) if t.is_floating_point() else t)(torch.as_tensor(a)))
    B, H, Sq, Skv, Dh, R = 2, 32, 1, 8192, 128, 16
    return {
        "q": _w((lambda *s: torch.randn(*s, dtype=torch.bfloat16) * 0.8)(B, H, Sq, Dh)),
        "k": _w((lambda *s: torch.randn(*s, dtype=torch.bfloat16) * 0.8)(B, H, Skv, Dh)),
        "v": _w((lambda *s: torch.randn(*s, dtype=torch.bfloat16) * 0.05)(B, H, Skv, Dh)),
        "e_proj": _w((lambda *s: torch.randn(*s, dtype=torch.bfloat16) * 0.8)(R, Skv) * (Skv ** -0.5)),
        "f_proj": _w((lambda *s: torch.randn(*s, dtype=torch.bfloat16) * 0.05)(R, Skv) * (Skv ** -0.5)),
    }

def reference(q, k, v, e_proj, f_proj):
    B, H, Sq, Dh = q.shape
    kp = torch.einsum("rn,bhnd->bhrd", e_proj, k)
    vp = torch.einsum("rn,bhnd->bhrd", f_proj, v)
    scores = torch.einsum("bhqd,bhrd->bhqr", q, kp) * (Dh ** -0.5)
    p = _softmax(scores, axis=-1)
    o = torch.einsum("bhqr,bhrd->bhqd", p, vp)
    return o
```

```python
import sys

HEADER = """; Kernarg layout for this problem (64 bytes, ptrs only, base s[0:1]):
"""
NAME = "standalone__low_rank_proj_linformer__decode_kernel"

def gen(D=4, NT=True, STAMP=False, NTP=False, LDS=None, POL=None, POLV=None):
    L = []
    e = L.append
    NW = 8
    NG = 16
    assert NG % D == 0 and D % 2 == 0
    SLOT = 8192 + 256
    SC_OFF = 32768
    FLAG_OFF = SC_OFF + 256
    lds = LDS or (FLAG_OFF + 64)
    nt = " nt" if NT else ""
    if POL is not None: nt = (" " + POL.replace("_", " ")) if POL else ""
    ntp = " nt" if NTP else ""
    ACC = 8
    T = [40, 44]
    RING = 48
    def A(slot): return RING + slot * 36
    def R(slot, j): return RING + slot * 36 + 4 + 4 * j
    nvgpr = RING + D * 36
    def stamp(idx):
        if STAMP:
            e(f"    s_memrealtime s[{60+2*idx}:{61+2*idx}]")
    e(f"{NAME}:")
    e("    s_cmp_ge_u32 s2, 256")
    e("    s_cbranch_scc1 L_end")
    stamp(0)
    e("    s_load_dwordx8 s[4:11], s[0:1], 0")
    e("    s_load_dwordx8 s[12:19], s[0:1], 32")
    e("    v_lshrrev_b32 v1, 6, v0")
    e("    v_and_b32 v3, 63, v0                 ; lane")
    e("    v_readfirstlane_b32 s20, v1")
    e("    v_lshrrev_b32 v4, 4, v3              ; g")
    e("    v_and_b32 v5, 15, v3                 ; c / r")
    e("    s_and_b32 s21, s20, 3                ; w4")
    e("    v_lshlrev_b32 v1, 12, v4")
    e("    v_lshl_add_u32 v1, v5, 4, v1")
    e("    s_lshl_b32 s22, s21, 14")
    e("    v_add_u32 v1, s22, v1")
    e("    v_lshlrev_b32 v2, 14, v5")
    e("    v_lshl_add_u32 v2, v4, 5, v2")
    e("    s_lshl_b32 s22, s21, 7")
    e("    v_add_u32 v2, s22, v2")
    e("    v_lshlrev_b32 v6, 4, v5              ; q offset c*16")
    e("    s_lshl_b32 s23, s2, 19               ; wg*512KiB")
    e("    s_and_b32 s53, s2, 3")
    e("    s_lshl_b32 s53, s53, 12")
    e("    s_lshr_b32 s54, s2, 2                ; head")
    e("    s_lshl_b32 s55, s54, 8               ; head*256")
    e("    s_mov_b32 s48, 0x05040100")
    e("    s_mov_b32 s49, 0x07060302")
    e("    s_mov_b32 s26, 0x80000")
    e("    s_mov_b32 s27, 0x20000")
    e("    s_mov_b32 s31, 0x20000")
    e("    s_mov_b32 s34, 256")
    e("    s_mov_b32 s35, 0x20000")
    e("    s_cmp_ge_u32 s20, 4")
    e("    s_waitcnt lgkmcnt(0)")
    e("    s_cselect_b32 s24, s8, s6")
    e("    s_cselect_b32 s25, s9, s7")
    e("    s_cselect_b32 s28, s12, s10")
    e("    s_cselect_b32 s29, s13, s11")
    e("    s_add_u32 s24, s24, s23")
    e("    s_addc_u32 s25, s25, 0")
    e("    s_add_u32 s28, s28, s53")
    e("    s_addc_u32 s29, s29, 0")
    e("    s_sub_u32 s30, 0x40000, s53")
    e("    s_add_u32 s32, s4, s55")
    e("    s_addc_u32 s33, s5, 0")
    def issue(slot, s, pol):
        e(f"    buffer_load_dwordx4 v[{A(slot)}:{A(slot)+3}], v2, s[28:31], 0 offen offset:{s*16}{ntp}")
        for j in range(8):
            r = R(slot, j)
            e(f"    buffer_load_dwordx4 v[{r}:{r+3}], v1, s[24:27], 0 offen offset:{s*2048+j*256}{pol}")
        if s == 1:
            e("    v_add_u32 v1, 0x10000, v1")
            e("    v_add_u32 v2, 0x200, v2")
    def stream(tag, pol):
        e("    buffer_load_dwordx4 v[4:7], v6, s[32:35], 0 offen")
        for slot in range(D):
            issue(slot, slot & 1, pol)
        stamp(1)
        for i in range(32):
            e(f"    v_mov_b32 v{ACC+i}, 0")
        e("    s_movk_i32 s52, %d" % (NG // D))
        e(f"L_loop{tag}:")
        e("    s_sub_u32 s52, s52, 1")
        e("    s_cmp_eq_u32 s52, 0")
        for slot in range(D):
            e(f"    s_cbranch_scc0 L_w{tag}{slot}")
            e(f"    s_waitcnt vmcnt({(D-1-slot)*9})")
            e(f"L_w{tag}{slot}:")
            e(f"    s_waitcnt vmcnt({(D-1)*9})")
            def perms(i, t):
                m, hh = i >> 1, i & 1
                for tt in range(4):
                    e(f"    v_perm_b32 v{T[t]+tt}, v{R(slot,2*tt+1)+m}, v{R(slot,2*tt)+m}, s{48+hh}")
            perms(0, 0)
            for i in range(8):
                if i + 1 < 8:
                    perms(i + 1, (i + 1) & 1)
                else:
                    e("    s_nop 0")
                a = ACC + 4 * i
                e(f"    v_mfma_f32_16x16x32_bf16 v[{a}:{a+3}], v[{A(slot)}:{A(slot)+3}], v[{T[i&1]}:{T[i&1]+3}], v[{a}:{a+3}]")
            e(f"    s_cbranch_scc1 L_s{tag}{slot}")
            issue(slot, slot & 1, pol)
            e(f"L_s{tag}{slot}:")
        e(f"    s_cbranch_scc0 L_loop{tag}")
    if POLV is None:
        stream("", nt)
    else:
        pv = (" " + POLV.replace("_", " ")) if POLV else ""
        e("    s_cmp_ge_u32 s20, 4")
        e("    s_cbranch_scc1 L_vstream")
        stream("k", nt)
        e("    s_branch L_sdone")
        e("L_vstream:")
        stream("v", pv)
        e("L_sdone:")
    e("    s_mul_i32 s56, s54, %d              ; head*4*SLOT" % (4 * SLOT))
    e("    s_add_u32 s36, s18, s56")
    e("    s_addc_u32 s37, s19, 0")
    e("    s_mov_b32 s38, %d" % (4 * SLOT))
    e("    s_mov_b32 s39, 0x20000")
    e("    s_add_u32 s40, s14, s55")
    e("    s_addc_u32 s41, s15, 0")
    e("    s_mov_b32 s42, 256")
    e("    s_mov_b32 s43, 0x20000")
    e("    s_mov_b32 s44, s16")
    e("    s_mov_b32 s45, s17")
    e("    s_mov_b32 s46, 256")
    e("    s_mov_b32 s47, 0x20000")
    stamp(2)
    e("    v_and_b32 v3, 63, v0")
    e("    s_cmp_ge_u32 s20, 4")
    e("    s_cbranch_scc1 L_vwave")
    q = 48
    for k in range(4):
        e(f"    v_lshlrev_b32 v{q+2*k}, 16, v{4+k}")
        e(f"    v_and_b32 v{q+2*k+1}, 0xffff0000, v{4+k}")
    e("    s_nop 1")
    for t in range(4):
        e(f"    v_mul_f32 v{56+t}, v{q}, v{ACC+t}")
    for i in range(1, 8):
        for t in range(4):
            e(f"    v_fmac_f32 v{56+t}, v{q+i}, v{ACC+4*i+t}")
    for sh in (8, 4, 2, 1):
        e("    s_nop 0")
        for t in range(4):
            e(f"    v_add_f32_dpp v{56+t}, v{56+t}, v{56+t} row_ror:{sh} row_mask:0xf bank_mask:0xf")
    e("    v_lshrrev_b32 v60, 4, v3")
    e("    v_lshlrev_b32 v60, 4, v60")
    e("    s_lshl_b32 s22, s20, 6")
    e(f"    s_add_u32 s22, s22, {SC_OFF}")
    e("    v_add_u32 v60, s22, v60")
    e("    s_mov_b32 exec_lo, 0x00010001")
    e("    s_mov_b32 exec_hi, 0x00010001")
    e("    ds_write_b128 v60, v[56:59]")
    e("    s_mov_b64 exec, -1")
    e("    s_branch L_join")
    e("L_vwave:")
    e("    s_sub_u32 s22, s20, 4")
    e("    s_lshl_b32 s22, s22, 13")
    e("    v_lshl_add_u32 v60, v3, 4, s22")
    e("    s_nop 3")
    for i in range(8):
        e(f"    ds_write_b128 v60, v[{ACC+4*i}:{ACC+4*i+3}] offset:{i*1024}")
    e("L_join:")
    e("    s_waitcnt lgkmcnt(0)")
    e("    s_barrier")
    e("    v_lshlrev_b32 v61, 4, v0             ; tid*16")
    for j in range(4):
        e(f"    ds_read_b128 v[{64+4*j}:{67+4*j}], v61 offset:{j*8192}")
    e("    v_lshrrev_b32 v62, 4, v3")
    e("    v_lshlrev_b32 v62, 4, v62            ; g*16")
    for j in range(4):
        e(f"    ds_read_b128 v[{80+4*j}:{83+4*j}], v62 offset:{SC_OFF+j*64}")
    e("    s_and_b32 s22, s2, 3")
    e(f"    s_mul_i32 s22, s22, {SLOT}")
    e("    v_add_u32 v63, s22, v61")
    e("    s_waitcnt lgkmcnt(4)")
    for t in range(4):
        e(f"    v_add_f32 v{64+t}, v{64+t}, v{68+t}")
        e(f"    v_add_f32 v{72+t}, v{72+t}, v{76+t}")
    for t in range(4):
        e(f"    v_add_f32 v{64+t}, v{64+t}, v{72+t}")
    e("    buffer_store_dwordx4 v[64:67], v63, s[36:39], 0 offen sc1")
    e("    s_cmp_lg_u32 s20, 0")
    e("    s_cbranch_scc1 L_nosc")
    e("    s_waitcnt lgkmcnt(0)")
    for t in range(4):
        e(f"    v_add_f32 v{80+t}, v{80+t}, v{84+t}")
        e(f"    v_add_f32 v{88+t}, v{88+t}, v{92+t}")
    for t in range(4):
        e(f"    v_add_f32 v{80+t}, v{80+t}, v{88+t}")
    e("    v_add_u32 v96, s22, v62")
    e("    v_add_u32 v96, 8192, v96")
    e("    s_mov_b32 exec_lo, 0x00010001")
    e("    s_mov_b32 exec_hi, 0x00010001")
    e("    buffer_store_dwordx4 v[80:83], v96, s[36:39], 0 offen sc1")
    e("    s_mov_b64 exec, -1")
    e("L_nosc:")
    e("    s_waitcnt vmcnt(0) lgkmcnt(0)")
    stamp(3)
    e("    s_barrier")
    e("    s_cmp_lg_u32 s20, 0")
    e("    s_cbranch_scc1 L_noat")
    e("    v_mov_b32 v97, 1")
    e("    s_lshl_b32 s22, s54, 2")
    e("    v_mov_b32 v98, s22")
    e("    s_mov_b64 exec, 1")
    e("    buffer_atomic_add v97, v98, s[44:47], 0 offen sc0")
    e("    s_waitcnt vmcnt(0)")
    e(f"    v_mov_b32 v98, {FLAG_OFF}")
    e("    ds_write_b32 v98, v97")
    e("    s_mov_b64 exec, -1")
    e("    s_waitcnt lgkmcnt(0)")
    e("L_noat:")
    e("    s_barrier")
    e(f"    v_mov_b32 v98, {FLAG_OFF}")
    e("    ds_read_b32 v97, v98")
    e("    s_waitcnt lgkmcnt(0)")
    e("    v_readfirstlane_b32 s22, v97")
    stamp(4)
    e("    s_cmp_lg_u32 s22, 3")
    e("    s_cbranch_scc1 L_done")
    for j in range(4):
        e(f"    buffer_load_dwordx4 v[{80+4*j}:{83+4*j}], v62, s[36:39], 0 offen offset:0 sc1" if False else
          f"    v_add_u32 v{100+j}, {j*SLOT+8192}, v62")
    for j in range(4):
        e(f"    v_add_u32 v{104+j}, {j*SLOT}, v61")
    for j in range(4):
        e(f"    buffer_load_dwordx4 v[{80+4*j}:{83+4*j}], v{100+j}, s[36:39], 0 offen sc1")
    for j in range(4):
        e(f"    buffer_load_dwordx4 v[{64+4*j}:{67+4*j}], v{104+j}, s[36:39], 0 offen sc1")
    e("    s_waitcnt vmcnt(4)")
    for t in range(4):
        e(f"    v_add_f32 v{80+t}, v{80+t}, v{84+t}")
        e(f"    v_add_f32 v{88+t}, v{88+t}, v{92+t}")
    for t in range(4):
        e(f"    v_add_f32 v{80+t}, v{80+t}, v{88+t}")
    e("    v_max_f32 v84, v80, v81")
    e("    v_max3_f32 v84, v82, v83, v84")
    def xg(op, v, tmp):
        e(f"    v_mov_b32 v{tmp}, v{v}")
        e("    s_nop 1")
        e(f"    v_permlane16_swap_b32 v{v}, v{tmp}")
        e("    s_nop 1")
        e(f"    {op} v{v}, v{v}, v{tmp}")
        e(f"    v_mov_b32 v{tmp}, v{v}")
        e("    s_nop 1")
        e(f"    v_permlane32_swap_b32 v{v}, v{tmp}")
        e("    s_nop 1")
        e(f"    {op} v{v}, v{v}, v{tmp}")
    xg("v_max_f32", 84, 85)
    import math
    c1 = (128 ** -0.5) * math.log2(math.e)
    import struct
    c1h = struct.unpack("<I", struct.pack("<f", c1))[0]
    e(f"    s_mov_b32 s22, 0x{c1h:08x}")
    for t in range(4):
        e(f"    v_sub_f32 v{80+t}, v{80+t}, v84")
    for t in range(4):
        e(f"    v_mul_f32 v{80+t}, s22, v{80+t}")
    for t in range(4):
        e(f"    v_exp_f32 v{80+t}, v{80+t}")
    e("    s_nop 0")
    e("    v_add_f32 v86, v80, v81")
    e("    v_add_f32 v87, v82, v83")
    e("    v_add_f32 v86, v86, v87")
    xg("v_add_f32", 86, 87)
    e("    v_rcp_f32 v86, v86")
    e("    s_waitcnt vmcnt(0)")
    for t in range(4):
        e(f"    v_add_f32 v{64+t}, v{64+t}, v{68+t}")
        e(f"    v_add_f32 v{72+t}, v{72+t}, v{76+t}")
    for t in range(4):
        e(f"    v_add_f32 v{64+t}, v{64+t}, v{72+t}")
    e("    v_mul_f32 v88, v64, v80")
    for t in range(1, 4):
        e(f"    v_fmac_f32 v88, v{64+t}, v{80+t}")
    xg("v_add_f32", 88, 89)
    e("    v_mul_f32 v88, v88, v86")
    e("    v_cvt_pk_bf16_f32 v88, v88, v88")
    e("    v_and_b32 v90, 15, v3")
    e("    v_lshlrev_b32 v90, 4, v90")
    e("    s_lshl_b32 s22, s20, 1")
    e("    v_add_u32 v90, s22, v90")
    e("    s_mov_b64 exec, 0xffff")
    e("    buffer_store_short v88, v90, s[40:43], 0 offen")
    e("L_done:")
    if STAMP:
        stamp(5)
        e("    s_waitcnt vmcnt(0) lgkmcnt(0)")
        e("    s_mov_b64 exec, 1")
        e("    s_add_u32 s56, s18, 0x1000000")
        e("    s_addc_u32 s57, s19, 0")
        e("    s_lshl_b32 s22, s2, 3")
        e("    s_add_u32 s22, s22, s20")
        e("    s_lshl_b32 s22, s22, 6")
        e("    v_mov_b32 v1, s22")
        for k in range(6):
            e(f"    v_mov_b32 v2, s{60+2*k}")
            e(f"    v_mov_b32 v3, s{61+2*k}")
            e(f"    global_store_dwordx2 v1, v[2:3], s[56:57] offset:{8*k}")
            e("    s_nop 1")
    e("L_end:")
    e("    s_endpgm")
    body = "\n".join(L)
    txt = HEADER + f"; @launch grid=(256,1,1) block=(512,1,1) lds={lds}\n"
    txt += f""".amdgcn_target "amdgcn-amd-amdhsa--gfx950"
.text
.globl {NAME}
.p2align 8
.type {NAME},@function
{body}
.section .rodata,"a"
.p2align 6
.amdhsa_kernel {NAME}
  .amdhsa_next_free_vgpr {max(nvgpr,112)}
  .amdhsa_next_free_sgpr 80
  .amdhsa_accum_offset {(max(nvgpr,112)+3)//4*4}
  .amdhsa_group_segment_fixed_size 0
  .amdhsa_kernarg_size 64
  .amdhsa_user_sgpr_count 2
  .amdhsa_user_sgpr_kernarg_segment_ptr 1
  .amdhsa_system_sgpr_workgroup_id_x 1
.end_amdhsa_kernel
"""
    return txt

if __name__ == "__main__":
    import argparse
    p = argparse.ArgumentParser()
    p.add_argument("-o", default="standalone__low_rank_proj_linformer__decode.s")
    p.add_argument("-D", type=int, default=4)
    p.add_argument("--nt", type=int, default=1)
    p.add_argument("--ntp", type=int, default=0)
    p.add_argument("--stamp", type=int, default=0)
    p.add_argument("--pol", default=None)
    p.add_argument("--polv", default=None)
    a = p.parse_args()
    open(a.o, "w").write(gen(D=a.D, NT=bool(a.nt), STAMP=bool(a.stamp), NTP=bool(a.ntp), POL=a.pol, POLV=a.polv))
```

```python
import sys, math, struct
from gen1 import HEADER, NAME

def gen(NSTAT=192, STAMP=False, LDS=83968, POL=" nt", KFLAG=4, KP=10, TOUCH=True, EARLY=True, KTOUCH=1, SMAP=None, CPF=0, OUTSC="", ROT=0, PACK=1, KPOLL=1, POLLSC=" sc1", MAP=0):
    assert 160 <= NSTAT <= 256 and NSTAT % 16 == 0
    L = []
    e = L.append
    NWV = 4
    STR = 16
    REG = 8192
    BOARD, SLOTS, ARR = 1024, 2048, 128
    ACC = 8
    T = [40, 44]
    A0, A1, A1C = 48, 52, 56
    R0 = [60, 92]
    P = 128
    def R(slot, j): return R0[slot] + 4 * j
    nvgpr = 148 if PACK else 144
    PACKOFF = 0x100000
    smap = SMAP or {0:0, 1:1, 2:2, 3:3, 4:4, 5:5}
    def stamp(idx):
        if STAMP and idx in smap:
            k = smap[idx]
            e(f"    s_memrealtime s[{80+2*k}:{81+2*k}]")
    def process(slot, a):
        def perms(i, t):
            m, hh = i >> 1, i & 1
            for tt in range(4):
                e(f"    v_perm_b32 v{T[t]+tt}, v{R(slot,2*tt+1)+m}, v{R(slot,2*tt)+m}, s{48+hh}")
        perms(0, 0)
        for i in range(8):
            if i + 1 < 8:
                perms(i + 1, (i + 1) & 1)
            else:
                e("    s_nop 0")
            d = ACC + 4 * i
            e(f"    v_mfma_f32_16x16x32_bf16 v[{d}:{d+3}], v[{a}:{a+3}], v[{T[i&1]}:{T[i&1]+3}], v[{d}:{d+3}]")
    def loadA():
        e(f"    buffer_load_dwordx4 v[{A0}:{A0+3}], v2, s[28:31], s51 offen")
        if PACK:
            e(f"    buffer_load_dwordx4 v[{A1}:{A1+3}], v2, s[28:31], s52 offen")
        else:
            e(f"    buffer_load_dwordx4 v[{A1}:{A1+3}], v2, s[28:31], s51 offen offset:16")
    def loadD(slot):
        for j in range(8):
            r = R(slot, j)
            e(f"    buffer_load_dwordx4 v[{r}:{r+3}], v1, s[24:27], s50 offen offset:{slot*2048+j*256}{POL}")
    def lane0(on):
        e("    s_mov_b64 exec, 1" if on else "    s_mov_b64 exec, -1")
    e(f"{NAME}:")
    e("    s_cmp_ge_u32 s2, 256")
    e("    s_cbranch_scc1 L_end")
    stamp(0)
    e("    s_load_dwordx16 s[4:19], s[0:1], 0")
    if CPF:
        e("    s_getpc_b64 s[76:77]")
        e("L_pc:")
        e("    v_and_b32 v3, 63, v0                 ; lane")
        e("    v_lshlrev_b32 v135, 7, v3")
        e("    v_min_u32 v135, L_end-L_pc, v135")
        e("    global_load_dword v135, v135, s[76:77]")
    e("    v_lshrrev_b32 v1, 6, v0")
    e("    v_and_b32 v3, 63, v0                 ; lane")
    e("    v_readfirstlane_b32 s20, v1")
    e("    v_lshrrev_b32 v4, 4, v3              ; g")
    e("    v_and_b32 v5, 15, v3                 ; c / r")
    e("    v_lshlrev_b32 v1, 12, v4")
    e("    v_lshl_add_u32 v1, v5, 4, v1")
    e("    v_lshlrev_b32 v2, 14, v5")
    e("    v_lshl_add_u32 v2, v4, 5, v2")
    if ROT:
        e("    s_lshr_b32 s21, s2, 3")
        e("    s_add_u32 s21, s21, s2")
        e("    s_and_b32 s21, s21, 3                ; member")
    elif MAP == 0:
        e("    s_and_b32 s21, s2, 3                 ; member")
    if MAP == 0:
        e("    s_lshr_b32 s54, s2, 2                ; head")
    elif MAP == 1:
        e("    s_lshr_b32 s54, s2, 4")
        e("    s_lshl_b32 s54, s54, 2")
        e("    s_and_b32 s22, s2, 3")
        e("    s_add_u32 s54, s54, s22              ; head")
        e("    s_lshr_b32 s21, s2, 2")
        e("    s_and_b32 s21, s21, 3")
    elif MAP == 2:
        e("    s_lshr_b32 s54, s2, 3")
        e("    s_lshl_b32 s54, s54, 1")
        e("    s_and_b32 s22, s2, 1")
        e("    s_add_u32 s54, s54, s22              ; head")
        e("    s_lshr_b32 s21, s2, 1")
        e("    s_and_b32 s21, s21, 3                ; member")
    elif MAP == 3:
        e("    s_lshr_b32 s54, s2, 5")
        e("    s_lshl_b32 s54, s54, 3")
        e("    s_and_b32 s22, s2, 7")
        e("    s_add_u32 s54, s54, s22              ; head")
        e("    s_lshr_b32 s21, s2, 3")
        e("    s_and_b32 s21, s21, 3                ; member")
    elif MAP == 4:
        e("    s_lshr_b32 s54, s2, 3")
        e("    s_lshl_b32 s54, s54, 1")
        e("    s_bfe_u32 s22, s2, 0x10001")
        e("    s_add_u32 s54, s54, s22              ; head")
        e("    s_bfe_u32 s21, s2, 0x10002")
        e("    s_lshl_b32 s21, s21, 1")
        e("    s_and_b32 s22, s2, 1")
        e("    s_add_u32 s21, s21, s22              ; member")
    e("    s_lshl_b32 s22, s21, 2")
    e("    s_add_u32 s60, s22, s20")
    e("    s_lshl_b32 s50, s60, 14")
    e("    s_lshl_b32 s51, s60, 7")
    e("    s_lshl_b32 s23, s54, 21              ; head*2MiB")
    e("    s_mov_b32 s26, 0x200000")
    e("    s_mov_b32 s27, 0x20000")
    e("    s_mov_b32 s30, 0x40000")
    e("    s_mov_b32 s31, 0x20000")
    e("    s_waitcnt lgkmcnt(0)")
    stamp(10)
    e("    s_add_u32 s24, s6, s23")
    e("    s_addc_u32 s25, s7, 0")
    if PACK:
        e("    s_cmp_lg_u32 s20, 3")
        e("    s_cbranch_scc1 L_norp")
        e("    s_cmp_lt_u32 s2, 128")
        e("    s_cselect_b32 s28, s10, s12")
        e("    s_cselect_b32 s29, s11, s13")
        e("    s_and_b32 s22, s2, 127")
        e("    s_lshl_b32 s22, s22, 7")
        e("    buffer_load_dwordx4 v[136:139], v2, s[28:31], s22 offen")
        e("    buffer_load_dwordx4 v[140:143], v2, s[28:31], s22 offen offset:16")
        e("L_norp:")
        e("    s_add_u32 s52, s51, 16")
    e("    s_mov_b32 s28, s10")
    e("    s_mov_b32 s29, s11")
    loadD(0)
    stamp(11)
    loadA()
    loadD(1)
    stamp(1)
    e("    s_lshl_b32 s55, s54, 8               ; head*256")
    e("    s_add_u32 s32, s4, s55")
    e("    s_addc_u32 s33, s5, 0")
    e("    s_mov_b32 s34, 256")
    e("    s_mov_b32 s35, 0x20000")
    e("    v_lshlrev_b32 v6, 4, v5              ; q offset c*16")
    e("    buffer_load_dwordx4 v[4:7], v6, s[32:35], 0 offen")
    e(f"    s_mul_i32 s22, s54, {REG}")
    e("    s_add_u32 s64, s18, s22")
    e("    s_addc_u32 s65, s19, 0")
    e(f"    s_mov_b32 s66, {REG}")
    e("    s_mov_b32 s67, 0x20000")
    e("    v_mov_b32 v124, 0")
    e("    v_mov_b32 v125, 0")
    e("    v_mov_b32 v126, 0")
    e("    s_mov_b32 s71, s60")
    e("    s_cmp_lg_u32 s60, 0")
    e("    s_cbranch_scc1 L_noinit")
    e("    v_lshlrev_b32 v133, 4, v3")
    for k in range(4):
        e(f"    v_mov_b32 v{136+k}, 0")
        e(f"    v_mov_b32 v{140+k}, -1")
    e("    buffer_store_dwordx4 v[136:139], v133, s[64:67], 0 offen sc1")
    for k in range(1, 4):
        e(f"    buffer_store_dwordx4 v[140:143], v133, s[64:67], 0 offen offset:{1024*k} sc1")
    e("L_noinit:")
    for i in range(32):
        e(f"    v_mov_b32 v{ACC+i}, 0")
    e("    s_add_u32 s58, s8, s23")
    e("    s_addc_u32 s59, s9, 0")
    e("    s_mov_b32 s56, s24")
    e("    s_mov_b32 s57, s25")
    e("    s_add_u32 s40, s14, s55")
    e("    s_addc_u32 s41, s15, 0")
    e("    s_mov_b32 s42, 256")
    e("    s_mov_b32 s43, 0x20000")
    e("    s_mov_b32 s44, s16")
    e("    s_mov_b32 s45, s17")
    e("    s_mov_b32 s46, 256")
    e("    s_mov_b32 s47, 0x20000")
    e("    s_lshl_b32 s22, s54, 2")
    e("    v_mov_b32 v127, s22")
    if PACK:
        e("    v_writelane_b32 v127, 0, 1")
        e("    v_lshlrev_b32 v144, 4, v3            ; lane*16")
        e("    v_mov_b32 v145, 1")
        e(f"    s_add_u32 s36, s18, {PACKOFF}")
        e("    s_addc_u32 s37, s19, 0")
        e("    s_mov_b32 s38, 0x80000")
        e("    s_mov_b32 s39, 0x20000")
        e("    s_mov_b32 s76, 0")
        e("    s_mov_b32 s77, 0")
        e("    s_mov_b32 s75, 0")
        if STAMP: e("    s_mov_b32 s79, 99")
    e("    s_mov_b32 s48, 0x05040100")
    e("    s_mov_b32 s49, 0x07060302")
    e("    v_lshrrev_b32 v132, 4, v3")
    e("    v_lshlrev_b32 v132, 4, v132          ; g*16")
    e("    v_and_b32 v133, 15, v3")
    e("    v_lshl_add_u32 v132, v133, 6, v132   ; c*64 + g*16")
    e(f"    v_add_u32 v132, {BOARD}, v132")
    e("    s_mov_b32 s61, 0")
    e("    s_mov_b32 s62, 0")
    e("    s_mov_b32 s63, 0")
    e("    s_mov_b32 s68, 0")
    e("    s_mov_b32 s72, 0")
    e("    s_mov_b32 s74, 0")
    e(f"    s_add_u32 s60, s60, {STR}")
    e("    s_waitcnt vmcnt(0)" if False else "    s_branch L_first")
    e("L_loop:")
    e("    s_waitcnt vmcnt(8)")
    e("L_s0:")
    e("    s_mov_b32 s75, 0")
    if PACK:
        e("    s_cmp_eq_u32 s76, 0")
        e("    s_cbranch_scc1 L_pkchk")
        e("L_pkret:")
    e("    s_cmp_eq_u32 s68, 0")
    e("    s_cbranch_scc1 L_stat")
    e("    v_readfirstlane_b32 s60, v124")
    e(f"    s_add_u32 s60, s60, {NSTAT}")
    e("L_stat:")
    e("    s_cmp_eq_u32 s72, 1")
    e("    s_cbranch_scc1 L_pchk")
    e("L_pret:")
    e("    s_cmp_lg_u32 s62, s61")
    e("    s_cbranch_scc1 L_flushk")
    e("L_flushret:")
    process(0, A0)
    for k in range(4):
        e(f"    v_mov_b32 v{A1C+k}, v{A1+k}")
    e("    s_cmp_ge_u32 s60, 256")
    e("    s_cbranch_scc1 L_skip0")
    e(f"    s_add_u32 s70, s60, {STR}")
    e(f"    s_cmp_lt_u32 s70, {NSTAT}")
    e("    s_cselect_b32 s73, 0, 1")
    if EARLY:
        e("    s_cbranch_scc1 L_noat0")
        e("    v_mov_b32 v134, 1")
        lane0(True)
        e("    buffer_atomic_add v134, v125, s[64:67], 0 offen sc0")
        lane0(False)
        e("    s_mov_b32 s75, 1")
        e("L_noat0:")
    e("    s_lshr_b32 s69, s60, 7")
    e("    s_and_b32 s22, s60, 127")
    e("    s_lshl_b32 s50, s22, 14")
    e("    s_lshl_b32 s51, s22, 7")
    e("    s_cmp_eq_u32 s69, 0")
    e("    s_cselect_b32 s24, s56, s58")
    e("    s_cselect_b32 s25, s57, s59")
    e("    s_cselect_b32 s28, s10, s12")
    e("    s_cselect_b32 s29, s11, s13")
    if PACK:
        e("    s_add_u32 s52, s51, 16")
        e("    s_cmp_eq_u32 s76, 0")
        e("    s_cbranch_scc1 L_adir")
        e("    s_mov_b32 s28, s36")
        e("    s_mov_b32 s29, s37")
        e("    s_lshl_b32 s51, s60, 11")
        e("    s_add_u32 s52, s51, 1024")
        e("L_adir:")
    loadA()
    loadD(0)
    e("    s_cmp_eq_u32 s75, 0")
    e("    s_cbranch_scc1 L_w10")
    if PACK:
        e("    s_cmp_eq_u32 s75, 1")
        e("    s_cbranch_scc1 L_w11")
        e("    s_waitcnt vmcnt(13)")
        e("    s_branch L_go1")
        e("L_w11:")
    e("    s_waitcnt vmcnt(11)")
    e("    s_branch L_go1")
    e("L_w10:")
    e("    s_waitcnt vmcnt(10)")
    e("    s_branch L_go1")
    e("L_skip0:")
    e("    s_waitcnt vmcnt(0)")
    e("L_go1:")
    process(1, A1C)
    e("    s_cmp_ge_u32 s60, 256")
    e("    s_cbranch_scc1 L_exit")
    e("    s_mov_b32 s62, s69")
    e("    s_add_u32 s63, s63, 1")
    if not EARLY:
        e("    s_cmp_eq_u32 s73, 0")
        e("    s_cbranch_scc1 L_noat1")
        e("    v_mov_b32 v134, 1")
        lane0(True)
        e("    buffer_atomic_add v134, v125, s[64:67], 0 offen sc0")
        lane0(False)
        e("L_noat1:")
    if PACK:
        e("    s_cmp_eq_u32 s76, 0")
    else:
        e(f"    s_cmp_le_u32 s63, {max(KFLAG, KTOUCH)}")
    e("    s_cbranch_scc1 L_early")
    e("L_earlyret:")
    e(f"    s_cmp_lt_u32 s63, {KP}")
    e("    s_cbranch_scc1 L_nopld")
    e("    s_cmp_lg_u32 s72, 0")
    e("    s_cbranch_scc1 L_nopld")
    e(f"    buffer_load_dwordx4 v[{P}:{P+3}], v132, s[64:67], 0 offen sc1")
    e("    s_mov_b32 s72, 1")
    e("L_nopld:")
    loadD(1)
    e("    s_mov_b32 s60, s70")
    e("    s_mov_b32 s68, s73")
    e("    s_cmp_eq_u32 s73, 0")
    e("    s_cbranch_scc1 L_loop")
    e("    s_waitcnt vmcnt(8)")
    e("    v_mov_b32 v124, v134")
    e("    s_nop 0")
    e("    s_branch L_s0")
    e("L_first:")
    if PACK:
        e("    s_cmp_lg_u32 s20, 3")
        e("    s_cbranch_scc1 L_first0")
        e("    s_lshl_b32 s22, s2, 11")
        e("    s_waitcnt vmcnt(19)")
        e("    buffer_store_dwordx4 v[136:139], v144, s[36:39], s22 offen sc1")
        e("    buffer_store_dwordx4 v[140:143], v144, s[36:39], s22 offen offset:1024 sc1")
        e("    s_mov_b32 s77, 1")
        e("    s_mov_b32 s75, 2")
        e("    s_waitcnt vmcnt(11)")
        e("    s_branch L_pkret")
        e("L_first0:")
    e("    s_cmp_lg_u32 s71, 0")
    e("    s_cbranch_scc1 L_first1")
    e("    s_waitcnt vmcnt(0)")
    e("    v_mov_b32 v126, 0x10000")
    lane0(True)
    e("    buffer_atomic_add v126, v127, s[44:47], 0 offen")
    lane0(False)
    e("    s_branch L_s0")
    e("L_first1:")
    e("    s_waitcnt vmcnt(9)")
    stamp(12)
    e("    s_branch L_s0")
    e("L_early:")
    if TOUCH:
        e(f"    s_cmp_lg_u32 s63, {KTOUCH}")
        e("    s_cbranch_scc1 L_notouch")
        e("    s_cmp_lg_u32 s20, 3")
        e("    s_cbranch_scc1 L_notouch")
        lane0(True)
        e("    global_load_dword v135, v125, s[58:59]")
        e("    global_load_dword v135, v125, s[12:13]")
        e("    global_load_dword v135, v125, s[64:65]")
        e("    global_load_dword v135, v125, s[40:41]")
        lane0(False)
        e("L_notouch:")
    if PACK:
        e(f"    s_cmp_lt_u32 s63, {KPOLL}")
    else:
        e(f"    s_cmp_lg_u32 s63, {KFLAG}")
    e("    s_cbranch_scc1 L_earlyret")
    e(f"    buffer_load_dword v126, v127, s[44:47], 0 offen{POLLSC}")
    e("    s_branch L_earlyret")
    if PACK:
        e("L_pkchk:")
        e("    s_cmp_eq_u32 s77, 0")
        e("    s_cbranch_scc1 L_pknob")
        lane0(True)
        e("    buffer_atomic_add v145, v125, s[44:47], 0 offen")
        lane0(False)
        e("    s_mov_b32 s77, 0")
        e("    s_mov_b32 s75, 1")
        stamp(15)
        e("L_pknob:")
        e("    v_readlane_b32 s22, v126, 1")
        e("    s_and_b32 s22, s22, 0xffff")
        e("    s_cmp_lg_u32 s22, 256")
        e("    s_cbranch_scc1 L_pkret")
        e("    s_mov_b32 s76, 1")
        if STAMP: e("    s_mov_b32 s79, s63")
        stamp(14)
        e("    s_mov_b32 s30, 0x80000")
        e("    v_mov_b32 v2, v144")
        e("    s_branch L_pkret")
    def softmax_from_board(okl, badl):
        e(f"    v_max_u32 v136, v{P}, v{P+1}")
        e(f"    v_max3_u32 v136, v{P+2}, v{P+3}, v136")
        e("    v_cmp_eq_u32 vcc, -1, v136")
        e("    s_nop 4")
        e(f"    s_cbranch_vccnz {badl}")
        for sh in (8, 4, 2, 1):
            e("    s_nop 0")
            for t in range(4):
                e(f"    v_add_f32_dpp v{P+t}, v{P+t}, v{P+t} row_ror:{sh} row_mask:0xf bank_mask:0xf")
        e(f"    v_max_f32 v136, v{P}, v{P+1}")
        e(f"    v_max3_f32 v136, v{P+2}, v{P+3}, v136")
        xg("v_max_f32", 136, 137)
        c1 = (128 ** -0.5) * math.log2(math.e)
        c1h = struct.unpack("<I", struct.pack("<f", c1))[0]
        e(f"    s_mov_b32 s22, 0x{c1h:08x}")
        for t in range(4):
            e(f"    v_sub_f32 v{P+t}, v{P+t}, v136")
        for t in range(4):
            e(f"    v_mul_f32 v{P+t}, s22, v{P+t}")
        for t in range(4):
            e(f"    v_exp_f32 v{P+t}, v{P+t}")
        e("    s_nop 0")
        e(f"    v_add_f32 v136, v{P}, v{P+1}")
        e(f"    v_add_f32 v137, v{P+2}, v{P+3}")
        e("    v_add_f32 v136, v136, v137")
        xg("v_add_f32", 136, 137)
        e("    v_rcp_f32 v136, v136")
        e("    s_nop 0")
        for t in range(4):
            e(f"    v_mul_f32 v{P+t}, v{P+t}, v136")
        e("    s_mov_b32 s72, 2")
        e(f"    s_branch {okl}")
    def xg(op, v, tmp):
        e(f"    v_mov_b32 v{tmp}, v{v}")
        e("    s_nop 1")
        e(f"    v_permlane16_swap_b32 v{v}, v{tmp}")
        e("    s_nop 1")
        e(f"    {op} v{v}, v{v}, v{tmp}")
        e(f"    v_mov_b32 v{tmp}, v{v}")
        e("    s_nop 1")
        e(f"    v_permlane32_swap_b32 v{v}, v{tmp}")
        e("    s_nop 1")
        e(f"    {op} v{v}, v{v}, v{tmp}")
    e("L_pchk:")
    e("L_pchk_x:")
    softmax_from_board("L_pdone", "L_pbad")
    e("L_pbad:")
    e("    s_mov_b32 s72, 0")
    e("L_pdone:")
    e("    s_cmp_eq_u32 s74, 1")
    e("    s_cbranch_scc1 L_exitp")
    e("    s_branch L_pret")
    e("L_flushk:")
    e("    s_nop 7")
    for k in range(4):
        e(f"    v_lshlrev_b32 v40, 16, v{4+k}")
        e(f"    v_and_b32 v41, 0xffff0000, v{4+k}")
        for t in range(4):
            if k == 0:
                e(f"    v_mul_f32 v{44+t}, v40, v{ACC+t}")
            else:
                e(f"    v_fmac_f32 v{44+t}, v40, v{ACC+8*k+t}")
        for t in range(4):
            e(f"    v_fmac_f32 v{44+t}, v41, v{ACC+8*k+4+t}")
    for sh in (8, 4, 2, 1):
        e("    s_nop 0")
        for t in range(4):
            e(f"    v_add_f32_dpp v{44+t}, v{44+t}, v{44+t} row_ror:{sh} row_mask:0xf bank_mask:0xf")
    e("    s_mov_b32 s22, 0xfffffffe")
    for t in range(4):
        e(f"    v_min_u32 v{44+t}, s22, v{44+t}")
    e("L_flagwait:")
    e("    s_cmp_eq_u32 s71, 0")
    e("    s_cbranch_scc1 L_flagok")
    e("    v_readfirstlane_b32 s22, v126")
    e("    s_lshr_b32 s22, s22, 16")
    e("    s_cmp_lg_u32 s22, 0")
    e("    s_cbranch_scc1 L_flagok")
    e("    s_sleep 8")
    e("    buffer_load_dword v126, v127, s[44:47], 0 offen sc1")
    e("    s_waitcnt vmcnt(0)")
    e("    s_branch L_flagwait")
    e("L_flagok:")
    e("    v_lshrrev_b32 v40, 4, v3")
    e("    v_lshlrev_b32 v40, 4, v40")
    e("    s_lshl_b32 s22, s71, 6")
    e(f"    s_add_u32 s22, s22, {BOARD}")
    e("    v_add_u32 v40, s22, v40")
    e("    s_mov_b32 exec_lo, 0x00010001")
    e("    s_mov_b32 exec_hi, 0x00010001")
    e("    buffer_store_dwordx4 v[44:47], v40, s[64:67], 0 offen sc1")
    e("    s_mov_b64 exec, -1")
    for i in range(32):
        e(f"    v_mov_b32 v{ACC+i}, 0")
    e("    s_mov_b32 s61, 1")
    stamp(13)
    e("    s_mov_b32 s75, 1")
    e("    s_branch L_flushret")
    e("L_exit:")
    stamp(2)
    e("    s_mov_b32 s74, 1")
    e("L_exitp:")
    e("    s_cmp_eq_u32 s72, 2")
    e("    s_cbranch_scc1 L_havep")
    e(f"    buffer_load_dwordx4 v[{P}:{P+3}], v132, s[64:67], 0 offen sc1")
    e("    s_waitcnt vmcnt(0)")
    e("    s_branch L_pchk_x")
    e("L_havep:")
    X = 40
    for i in range(8):
        e(f"    v_mul_f32 v{X+i}, v{P}, v{ACC+4*i}")
    for t in range(1, 4):
        for i in range(8):
            e(f"    v_fmac_f32 v{X+i}, v{P+t}, v{ACC+4*i+t}")
    e("    s_nop 1")
    for k in range(4):
        e(f"    v_permlane32_swap_b32 v{X+k}, v{X+4+k}")
    e("    s_nop 1")
    for k in range(4):
        e(f"    v_add_f32 v{X+k}, v{X+k}, v{X+4+k}")
    e("    s_nop 1")
    e(f"    v_permlane16_swap_b32 v{X}, v{X+2}")
    e(f"    v_permlane16_swap_b32 v{X+1}, v{X+3}")
    e("    s_nop 1")
    e(f"    v_add_f32 v{X}, v{X}, v{X+2}")
    e(f"    v_add_f32 v{X+1}, v{X+1}, v{X+3}")
    e("    v_lshlrev_b32 v48, 3, v3")
    e("    s_lshl_b32 s22, s20, 9")
    e("    v_add_u32 v49, s22, v48")
    e(f"    ds_write_b64 v49, v[{X}:{X+1}]")
    e("    s_waitcnt lgkmcnt(0)")
    e("    s_barrier")
    e("    s_cmp_lg_u32 s20, 0")
    e("    s_cbranch_scc1 L_done")
    for j in range(1, 4):
        e(f"    ds_read_b64 v[{48+2*j}:{49+2*j}], v48 offset:{512*j}")
    e(f"    s_lshl_b32 s22, s21, 9")
    e(f"    v_add_u32 v56, s22, v48")
    e(f"    v_add_u32 v56, {SLOTS}, v56")
    for j in range(1, 4):
        e(f"    s_add_u32 s23, s21, {j}")
        e("    s_and_b32 s23, s23, 3")
        e("    s_lshl_b32 s23, s23, 9")
        e(f"    s_add_u32 s23, s23, {SLOTS}")
        e(f"    v_add_u32 v{56+j}, s23, v48")
    e(f"    v_mov_b32 v60, 1")
    e(f"    v_mov_b32 v61, {ARR}")
    e("    s_waitcnt lgkmcnt(0)")
    e(f"    v_add_f32 v{X}, v{X}, v50")
    e(f"    v_add_f32 v{X+1}, v{X+1}, v51")
    e("    v_add_f32 v52, v52, v54")
    e("    v_add_f32 v53, v53, v55")
    e(f"    v_add_f32 v{X}, v{X}, v52")
    e(f"    v_add_f32 v{X+1}, v{X+1}, v53")
    e("    s_mov_b32 s22, 0xfffffffe")
    e(f"    v_min_u32 v62, s22, v{X}")
    e(f"    v_min_u32 v63, s22, v{X+1}")
    e("    buffer_store_dwordx2 v[62:63], v56, s[64:67], 0 offen sc1")
    lane0(True)
    e("    buffer_atomic_add v60, v61, s[64:67], 0 offen sc0")
    lane0(False)
    stamp(3)
    e("L_slots:")
    for j in range(1, 4):
        e(f"    buffer_load_dwordx2 v[{62+2*j}:{63+2*j}], v{56+j}, s[64:67], 0 offen sc1")
    e("    s_waitcnt vmcnt(0)")
    e("    v_readfirstlane_b32 s22, v60")
    e("    s_cmp_lg_u32 s22, 3")
    e("    s_cbranch_scc1 L_done")
    e("    v_max_u32 v70, v64, v65")
    e("    v_max3_u32 v70, v66, v67, v70")
    e("    v_max3_u32 v70, v68, v69, v70")
    e("    v_cmp_eq_u32 vcc, -1, v70")
    e("    s_nop 4")
    e("    s_cbranch_vccnz L_slots")
    stamp(4)
    e(f"    v_add_f32 v{X}, v{X}, v64")
    e(f"    v_add_f32 v{X+1}, v{X+1}, v65")
    e("    v_add_f32 v66, v66, v68")
    e("    v_add_f32 v67, v67, v69")
    e(f"    v_add_f32 v{X}, v{X}, v66")
    e(f"    v_add_f32 v{X+1}, v{X+1}, v67")
    e(f"    v_cvt_pk_bf16_f32 v{X}, v{X}, v{X+1}")
    e("    v_and_b32 v71, 15, v3")
    e("    v_lshlrev_b32 v71, 4, v71")
    e("    v_lshrrev_b32 v72, 4, v3")
    e("    v_lshl_add_u32 v71, v72, 2, v71       ; 16c + 4g")
    e(f"    buffer_store_dword v{X}, v71, s[40:43], 0 offen{OUTSC}")
    e("L_done:")
    if STAMP:
        stamp(5)
        e("    s_getreg_b32 s92, hwreg(HW_REG_HW_ID)")
        e("    s_getreg_b32 s93, hwreg(HW_REG_XCC_ID)")
        e("    s_mov_b32 s94, s63")
        e("    s_mov_b32 s95, s79" if PACK else "    s_mov_b32 s95, s68")
        e("    s_waitcnt vmcnt(0) lgkmcnt(0)")
        e("    s_mov_b64 exec, 1")
        e("    s_add_u32 s56, s18, 0x1000000")
        e("    s_addc_u32 s57, s19, 0")
        e(f"    s_mul_i32 s22, s2, {NWV}")
        e("    s_add_u32 s22, s22, s20")
        e("    s_lshl_b32 s22, s22, 6")
        e("    v_mov_b32 v1, s22")
        for k in range(8):
            e(f"    v_mov_b32 v2, s{80+2*k}")
            e(f"    v_mov_b32 v3, s{81+2*k}")
            e(f"    global_store_dwordx2 v1, v[2:3], s[56:57] offset:{8*k}")
            e("    s_nop 1")
    e("L_end:")
    e("    s_endpgm")
    body = "\n".join(L)
    txt = HEADER + f"; @launch grid=(256,1,1) block=({NWV*64},1,1) lds={LDS}\n"
    txt += f""".amdgcn_target "amdgcn-amd-amdhsa--gfx950"
.text
.globl {NAME}
.p2align 8
.type {NAME},@function
{body}
.section .rodata,"a"
.p2align 6
.amdhsa_kernel {NAME}
  .amdhsa_next_free_vgpr {nvgpr}
  .amdhsa_next_free_sgpr 100
  .amdhsa_accum_offset {(nvgpr+3)//4*4}
  .amdhsa_group_segment_fixed_size 0
  .amdhsa_kernarg_size 64
  .amdhsa_user_sgpr_count 2
  .amdhsa_user_sgpr_kernarg_segment_ptr 1
  .amdhsa_system_sgpr_workgroup_id_x 1
.end_amdhsa_kernel
"""
    return txt

if __name__ == "__main__":
    import argparse
    p = argparse.ArgumentParser()
    p.add_argument("-o", default="standalone__low_rank_proj_linformer__decode.s")
    p.add_argument("--nstat", type=int, default=192)
    p.add_argument("--stamp", type=int, default=0)
    p.add_argument("--lds", type=int, default=83968)
    p.add_argument("--touch", type=int, default=0)
    p.add_argument("--early", type=int, default=1)
    p.add_argument("--kflag", type=int, default=4)
    p.add_argument("--smap", default=None)
    p.add_argument("--cpf", type=int, default=0)
    p.add_argument("--rot", type=int, default=0)
    p.add_argument("--pack", type=int, default=0)
    p.add_argument("--kpoll", type=int, default=1)
    p.add_argument("--map", type=int, default=0)
    p.add_argument("--pollsc", default="sc1")
    p.add_argument("--outsc", default="")
    a = p.parse_args()
    open(a.o, "w").write(gen(NSTAT=a.nstat, STAMP=bool(a.stamp), LDS=a.lds, TOUCH=bool(a.touch), EARLY=bool(a.early), KFLAG=a.kflag, SMAP=eval(a.smap) if a.smap else None, CPF=a.cpf, ROT=a.rot, PACK=a.pack, KPOLL=a.kpoll, MAP=a.map, POLLSC=(" "+a.pollsc) if a.pollsc else "", OUTSC=(" "+a.outsc) if a.outsc else ""))
```
